```python
import torch

def _softmax(x, axis=-1):
    return torch.softmax(x, dim=axis)
def _gelu(x):
    return torch.nn.functional.gelu(x, approximate="tanh")
def _silu(x):
    return torch.nn.functional.silu(x)
def _sigmoid(x):
    return torch.sigmoid(x)
def _layernorm(x, axis=-1, eps=1e-5):
    m = x.mean(dim=axis, keepdim=True)
    v = x.var(dim=axis, keepdim=True, unbiased=False)
    return (x - m) / torch.sqrt(v + eps)
def _scatter_add(tgt, idx, src, axis=0):
    return tgt.clone().index_add_(axis, idx, src)
def _segment_sum(src, seg, n):
    out = torch.zeros((n,) + src.shape[1:], dtype=src.dtype)
    return out.index_add_(0, seg, src)
def _pad(x, pw):
    flat = tuple(v for pair in reversed(pw) for v in pair)
    return torch.nn.functional.pad(x, flat)

kernel_name = 'sequential_preLN__ssm_conv_h3__dense_activation_relu__prompt'

def setup_inputs():

    _w = (lambda a: (lambda t: t.to(torch.bfloat16) if t.is_floating_point() else t)(torch.as_tensor(a)))
    def _A_setup():
        B, S, D = 1, 2048, 448
        ks = 4
        return {
            "q": _w((lambda *s: torch.randn(*s, dtype=torch.bfloat16) * 0.05)(B, S, D)),
            "k": _w((lambda *s: torch.randn(*s, dtype=torch.bfloat16) * 0.4)(B, S, D)),
            "v": _w((lambda *s: torch.randn(*s, dtype=torch.bfloat16) * 0.4)(B, S, D)),
            "shift_k": _w((lambda *s: torch.randn(*s, dtype=torch.bfloat16) * 0.4)(D, ks) * 0.5),
            "ssm_k": _w((lambda *s: torch.randn(*s, dtype=torch.bfloat16) * 0.4)(D, S) * (1.0 / S ** 0.5)),
            "ssm_D": _w((lambda *s: torch.randn(*s, dtype=torch.bfloat16) * 0.4)(D)),
        }
    _A_in = _A_setup()

    def _B_setup():
        B, S, D, Dff = 1, 2048, 448, 1792
        return {
            "x": _w((lambda *s: torch.randn(*s, dtype=torch.bfloat16) * 0.05)(B, S, D)),
            "w1": _w((lambda *s: torch.randn(*s, dtype=torch.bfloat16) * 0.05)(D, Dff)),
            "w2": _w((lambda *s: torch.randn(*s, dtype=torch.bfloat16) * 0.05)(Dff, D)),
        }
    _B_in = _B_setup()

    return {
        "A_q": _A_in["q"],
        "A_k": _A_in["k"],
        "A_v": _A_in["v"],
        "A_shift_k": _A_in["shift_k"],
        "A_ssm_k": _A_in["ssm_k"],
        "A_ssm_D": _A_in["ssm_D"],
        "B_x": _B_in["x"],
        "B_w1": _B_in["w1"],
        "B_w2": _B_in["w2"],
    }

def reference(A_q, A_k, A_v, A_shift_k, A_ssm_k, A_ssm_D, B_x, B_w1, B_w2):
    def _A_ref(q, k, v, shift_k, ssm_k, ssm_D):
        B, S, D = q.shape
        ks = shift_k.shape[-1]
        k_pad = _pad(k, ((0, 0), (ks - 1, 0), (0, 0)))
        k_shift = torch.zeros_like(k)
        for t in range(ks):
            k_shift = k_shift + k_pad[:, t:t + S, :] * shift_k[:, ks - 1 - t][None, None, :]
        kv = k_shift * v
        L = 2 * S
        kv_pad = _pad(kv, ((0, 0), (0, S), (0, 0)))
        kf_pad = _pad(ssm_k, ((0, 0), (0, S)))
        kv_f = (lambda x, axes=(-2,-1): torch.fft.rfft2(x.float(), dim=axes))(kv_pad[:, None, :, :], axes=(1, 2))
        kf_f = (lambda x, axes=(-2,-1): torch.fft.rfft2(x.float(), dim=axes))(kf_pad[:, None, :], axes=(1, 2))
        kf_f = (lambda x, *d: x.permute(*d))(kf_f, 1, 2, 0)
        y_f = kv_f * kf_f[None, :, :, :]
        y = (lambda x, s, axes=(-2,-1): torch.fft.irfft2(x, s=s, dim=axes).to(torch.bfloat16))(y_f, (1, L), axes=(1, 2))[:, 0, :S, :]
        y = y + kv * ssm_D[None, None, :]
        return q * y

    def _B_ref(x, w1, w2):
        h = torch.einsum("bsd,df->bsf", x, w1)
        zero = torch.zeros_like(h)
        h = torch.maximum(h, zero)
        return torch.einsum("bsf,fd->bsd", h, w2)

    x = A_q
    h = x + _A_ref(_layernorm(x, axis=-1), A_k, A_v, A_shift_k, A_ssm_k, A_ssm_D)
    h2 = h + _B_ref(_layernorm(h, axis=-1), B_w1, B_w2)
    return h2
```

```python
NAME = "sequential_preLN__ssm_conv_h3__dense_activation_relu__prompt"
S, D, F = 2048, 448, 1792

KVS     = 4096 + 128
WS_KVR  = 0x0000000
WS_XT   = 0x0200000
WS_ST1  = 0x0400000
WS_HT   = 0x0500000
WS_W1P  = 0x0700000
WS_W2P  = 0x0900000
WS_ST2  = 0x0B00000
WS_HP   = 0x0C00000
WS_SIZE = 0x1400000
WS_TS   = 0x2000000

class Asm:
    def __init__(self):
        self.l = []
    def __call__(self, s=""):
        for line in s.split("\n"):
            line = line.strip()
            if line:
                self.l.append(("" if line.endswith(":") else "  ") + line)
    def text(self):
        return "\n".join(self.l) + "\n"
    def nop(self, n):
        while n > 0:
            k = min(n, 16)
            self(f"s_nop {k-1}")
            n -= k

def v(i, n=1):
    return f"v{i}" if n == 1 else f"v[{i}:{i+n-1}]"
def a(i, n=1):
    return f"a{i}" if n == 1 else f"a[{i}:{i+n-1}]"
def s(i, n=1):
    return f"s{i}" if n == 1 else f"s[{i}:{i+n-1}]"

def srd(A, dst, ptr, nbytes):
    A(f"s_mov_b32 s{dst}, s{ptr}")
    A(f"s_mov_b32 s{dst+1}, s{ptr+1}")
    A(f"s_mov_b32 s{dst+2}, {nbytes}")
    A(f"s_mov_b32 s{dst+3}, 0x20000")

def kernel_text(name, body, vgpr, sgpr=96, accum=None):
    if accum is None:
        accum = min(256, (vgpr + 3) // 4 * 4)
    return f""".text
.globl {name}
.p2align 8
.type {name},@function
{name}:
{body}
.section .rodata,"a"
.p2align 6
.amdhsa_kernel {name}
  .amdhsa_next_free_vgpr {vgpr}
  .amdhsa_next_free_sgpr {sgpr}
  .amdhsa_accum_offset {accum}
  .amdhsa_group_segment_fixed_size 0
  .amdhsa_kernarg_size 96
  .amdhsa_user_sgpr_count 2
  .amdhsa_user_sgpr_kernarg_segment_ptr 1
  .amdhsa_system_sgpr_workgroup_id_x 1
  .amdhsa_float_denorm_mode_32 3
.end_amdhsa_kernel
"""

HEADER = """; Kernarg layout (96 bytes, pointers only, base s[0:1]):
"""
```

```python
from common import *

def bf16_round(A, dst, src, tmp=None):
    A(f"v_cvt_pk_bf16_f32 v{dst}, v{src}, v{src}")
    A(f"v_lshlrev_b32 v{dst}, 16, v{dst}")

def gen_k0():
    A = Asm()
    A("s_cmp_ge_u32 s2, 256")
    A("s_cbranch_scc1 K0_done")
    A("s_load_dwordx4 s[4:7], s[0:1], 0")
    A("s_load_dwordx4 s[8:11], s[0:1], 16")
    A("s_load_dwordx2 s[12:13], s[0:1], 32")
    A("s_load_dwordx2 s[14:15], s[0:1], 88")
    A("v_lshrrev_b32 v1, 6, v0")
    A("v_and_b32 v2, 63, v0")
    A("v_readfirstlane_b32 s40, v1")
    A("s_cmp_ge_u32 s2, 224")
    A("s_cbranch_scc1 K0_stats")
    A("s_mul_i32 s41, s2, 9363")
    A("s_lshr_b32 s41, s41, 16")
    A("s_mul_i32 s42, s41, 7")
    A("s_sub_u32 s42, s2, s42")
    A("s_mul_i32 s43, s41, 57344")
    A("s_lshl_b32 s47, s42, 7")
    A("s_add_u32 s43, s43, s47")
    A("s_mul_i32 s44, s40, 7168")
    A("s_add_u32 s44, s44, s43")
    A("s_add_u32 s45, s44, 28672")
    A("s_sub_u32 s46, s43, 7168")
    A("v_lshrrev_b32 v4, 3, v2")
    A("v_mul_u32_u24 v3, 896, v4")
    A("v_bfe_u32 v5, v2, 1, 2")
    A("v_bfe_u32 v6, v2, 4, 1")
    A("v_xor_b32 v5, v5, v6")
    A("s_and_b32 s47, s40, 1")
    A("s_lshl_b32 s47, s47, 1")
    A("v_xor_b32 v5, s47, v5")
    A("v_lshl_add_u32 v3, v5, 5, v3")
    A("v_and_b32 v6, 1, v2")
    A("v_lshl_add_u32 v3, v6, 4, v3")
    A("v_xor_b32 v7, 64, v3")
    A("s_lshl_b32 s48, s40, 10")
    A("s_waitcnt lgkmcnt(0)")
    srd(A, 16, 4, S*896)
    srd(A, 20, 6, S*896)
    srd(A, 24, 8, S*896)
    srd(A, 28, 14, WS_SIZE)
    srd(A, 32, 10, D*8)
    srd(A, 36, 12, D*4096)
    A("s_add_u32 m0, s48, 1024")
    A("s_nop 0")
    A("buffer_load_dwordx4 v7, s[20:23], s44 offen lds")
    A("s_add_u32 m0, s48, 5120")
    A("s_nop 0")
    A("buffer_load_dwordx4 v7, s[20:23], s45 offen lds")
    A("s_cmp_lg_u32 s40, 0")
    A("s_cbranch_scc1 K0_nohalo")
    A("s_cmp_eq_u32 s41, 0")
    A("s_cbranch_scc1 K0_zerohalo")
    A("s_mov_b32 m0, 0")
    A("s_nop 0")
    A("buffer_load_dwordx4 v3, s[20:23], s46 offen lds")
    A("s_branch K0_nohalo")
    A("K0_zerohalo:")
    A("v_mov_b32 v8, 0\nv_mov_b32 v9, 0\nv_mov_b32 v10, 0\nv_mov_b32 v11, 0")
    A("v_lshlrev_b32 v12, 4, v2")
    A("ds_write_b128 v12, v[8:11]")
    A("K0_nohalo:")
    for base, sr in ((9216, 24), (17408, 16)):
        A(f"s_add_u32 m0, s48, {base}")
        A("s_nop 0")
        A(f"buffer_load_dwordx4 v3, s[{sr}:{sr+3}], s44 offen lds")
        A(f"s_add_u32 m0, s48, {base+4096}")
        A("s_nop 0")
        A(f"buffer_load_dwordx4 v3, s[{sr}:{sr+3}], s45 offen lds")
    A("v_and_b32 v13, 15, v2")
    A("s_lshl_b32 s49, s42, 6")
    A("s_lshl_b32 s50, s40, 4")
    A("s_add_u32 s49, s49, s50")
    A("v_add_u32 v14, s49, v13")
    A("v_lshlrev_b32 v15, 3, v14")
    A("buffer_load_dwordx2 v[8:9], v15, s[32:35], 0 offen")
    A("v_lshlrev_b32 v15, 7, v13")
    A("s_lshl_b32 s50, s2, 13")
    A("s_lshl_b32 s51, s40, 11")
    A("s_add_u32 s50, s50, s51")
    A("buffer_load_dword v60, v15, s[36:39], s50 offen")
    A("v_lshrrev_b32 v4, 4, v2")
    A("v_bfe_u32 v5, v2, 2, 2")
    A("v_lshl_add_u32 v6, v4, 3, v5")
    A("v_lshlrev_b32 v16, 7, v6")
    A("v_lshrrev_b32 v5, 1, v5")
    A("v_and_b32 v6, 1, v4")
    A("v_lshl_or_b32 v5, v6, 1, v5")
    A("v_xor_b32 v5, s40, v5")
    A("v_lshl_add_u32 v16, v5, 5, v16")
    A("v_and_b32 v6, 3, v2")
    A("v_lshl_add_u32 v16, v6, 3, v16")
    A("v_xor_b32 v17, 64, v16")
    A("v_add_u32 v17, 1024, v17")
    A(f"v_mul_u32_u24 v18, {KVS}, v14")
    A("v_lshlrev_b32 v4, 4, v4")
    A("s_lshl_b32 s52, s41, 7")
    A(f"s_sub_u32 s53, {WS_KVR + 4080}, s52")
    A("v_sub_u32 v19, v18, v4")
    A("v_add_u32 v19, s53, v19")
    A(f"s_add_u32 s53, s52, {WS_XT}")
    A("v_add_u32 v20, v18, v4")
    A("v_add_u32 v20, s53, v20")
    A("v_subrev_u32 v21, 64, v19")
    A("s_waitcnt vmcnt(1) lgkmcnt(0)")
    A("s_barrier")
    for hh in range(2):
        R = 24 + 16*hh
        o = 4096*hh
        A(f"ds_read_b64_tr_b16 v[{R}:{R+1}], v16 offset:{o+512}")
        A(f"ds_read_b64_tr_b16 v[{R+2}:{R+3}], v17 offset:{o}")
        A(f"ds_read_b64_tr_b16 v[{R+4}:{R+5}], v17 offset:{o+512}")
        A(f"ds_read_b64_tr_b16 v[{R+6}:{R+7}], v16 offset:{9216+o}")
        A(f"ds_read_b64_tr_b16 v[{R+8}:{R+9}], v16 offset:{9216+o+512}")
        A(f"ds_read_b64_tr_b16 v[{R+10}:{R+11}], v16 offset:{17408+o}")
        A(f"ds_read_b64_tr_b16 v[{R+12}:{R+13}], v16 offset:{17408+o+512}")
    A("v_lshlrev_b32 v10, 16, v8")
    A("v_and_b32 v11, 0xffff0000, v8")
    A("v_lshlrev_b32 v12, 16, v9")
    A("v_and_b32 v13, 0xffff0000, v9")
    for hh in range(2):
        R = 24 + 16*hh
        A(f"s_waitcnt lgkmcnt({7*(1-hh)})")
        A(f"buffer_store_dwordx4 v[{R+10}:{R+13}], v20, s[28:31], 0 offen offset:{64*hh} sc0 sc1")
        K = lambda j: 64 + j + 3
        src = {-3:(R,1), -2:(R+1,0), -1:(R+1,1), 0:(R+2,0), 1:(R+2,1), 2:(R+3,0), 3:(R+3,1), 4:(R+4,0), 5:(R+4,1), 6:(R+5,0), 7:(R+5,1)}
        for j in range(-3, 8):
            r, hi = src[j]
            A(f"v_and_b32 v{K(j)}, 0xffff0000, v{r}" if hi else f"v_lshlrev_b32 v{K(j)}, 16, v{r}")
        for j in range(8):
            r = R + 6 + j//2
            A(f"v_and_b32 v{76+j}, 0xffff0000, v{r}" if j & 1 else f"v_lshlrev_b32 v{76+j}, 16, v{r}")
        for j in range(8):
            A(f"v_mul_f32 v{84+j}, v13, v{K(j-3)}")
        for j in range(8):
            A(f"v_fmac_f32 v{84+j}, v12, v{K(j-2)}")
        for j in range(8):
            A(f"v_fmac_f32 v{84+j}, v11, v{K(j-1)}")
        for j in range(8):
            A(f"v_fmac_f32 v{84+j}, v10, v{K(j)}")
        for j in range(8):
            A(f"v_mul_f32 v{84+j}, v{84+j}, v{76+j}")
        O = 92 + 4*hh
        for i in range(4):
            A(f"v_cvt_pk_bf16_f32 v{O+i}, v{84+7-2*i}, v{84+6-2*i}")
        A(f"buffer_store_dwordx4 v[{O}:{O+3}], v{19 if hh == 0 else 21}, s[28:31], 0 offen sc0 sc1")
    A("s_endpgm")
    A("K0_stats:")
    A("s_sub_u32 s41, s2, 224")
    A("s_lshl_b32 s41, s41, 6")
    A("s_lshl_b32 s42, s40, 4")
    A("s_add_u32 s41, s41, s42")
    A("v_lshrrev_b32 v4, 2, v2")
    A("v_add_u32 v4, s41, v4")
    A("v_mul_u32_u24 v3, 896, v4")
    A("v_and_b32 v5, 3, v2")
    A("v_lshl_add_u32 v3, v5, 4, v3")
    A("s_waitcnt lgkmcnt(0)")
    srd(A, 16, 4, S*896)
    srd(A, 28, 14, WS_SIZE)
    for i in range(14):
        A(f"buffer_load_dwordx4 v[{8+4*i}:{11+4*i}], v3, s[16:19], 0 offen offset:{64*i}")
    A("s_mov_b32 s44, 0x3f803f80")
    A("v_mov_b32 v64, 0\nv_mov_b32 v65, 0\nv_mov_b32 v66, 0\nv_mov_b32 v67, 0")
    for i in range(14):
        A(f"s_waitcnt vmcnt({13-i})")
        for j in range(4):
            r = 8 + 4*i + j
            A(f"v_dot2_f32_bf16 v{64+(j&1)}, v{r}, s44, v{64+(j&1)}")
            A(f"v_dot2_f32_bf16 v{66+(j&1)}, v{r}, v{r}, v{66+(j&1)}")
    A("s_nop 2")
    A("v_add_f32 v64, v64, v65")
    A("v_add_f32 v66, v66, v67")
    A("s_nop 1")
    A("v_add_f32_dpp v64, v64, v64 quad_perm:[1,0,3,2] row_mask:0xf bank_mask:0xf")
    A("v_add_f32_dpp v66, v66, v66 quad_perm:[1,0,3,2] row_mask:0xf bank_mask:0xf")
    A("s_nop 1")
    A("v_add_f32_dpp v64, v64, v64 quad_perm:[2,3,0,1] row_mask:0xf bank_mask:0xf")
    A("v_add_f32_dpp v66, v66, v66 quad_perm:[2,3,0,1] row_mask:0xf bank_mask:0xf")
    emit_ln_scalars(A, 64, 66, 68, 69, 70)
    A("v_lshlrev_b32 v5, 2, v4")
    A(f"v_add_u32 v5, {WS_ST1}, v5")
    A("buffer_store_dword v68, v5, s[28:31], 0 offen sc0 sc1")
    A("buffer_store_dword v69, v5, s[28:31], 0 offen offset:0 sc0 sc1" if False else f"v_add_u32 v6, 8192, v5")
    A("buffer_store_dword v69, v6, s[28:31], 0 offen sc0 sc1")
    A("K0_done:")
    A("s_endpgm")
    return A.text()

def emit_ln_scalars(A, s1, s2, ra, rb, t):
    A(f"s_mov_b32 s60, 0x{f32bits(1.0/448):08x}")
    A(f"v_mul_f32 v{s1}, s60, v{s1}")
    A(f"v_mul_f32 v{t}, v{s1}, v{s1}")
    A(f"v_fma_f32 v{s2}, v{s2}, s60, -v{t}")
    A(f"v_max_f32 v{s2}, 0, v{s2}")
    bf16_round(A, s2, s2)
    A(f"v_add_f32 v{s2}, 0x{f32bits(1e-5):08x}, v{s2}")
    bf16_round(A, s2, s2)
    A(f"v_sqrt_f32 v{t}, v{s2}")
    A("s_nop 0")
    bf16_round(A, t, t)
    A(f"v_rcp_f32 v{ra}, v{t}")
    bf16_round(A, s1, s1)
    A(f"v_mul_f32 v{rb}, v{s1}, v{ra}")
    A(f"v_sub_f32 v{rb}, 0, v{rb}")

import struct
def f32bits(x):
    return struct.unpack("<I", struct.pack("<f", x))[0]
```

```python
from common import *
from k0 import f32bits

HC_CH = 16640; HC_R = 4160
XR0 = 33280; XR_CH = 4608
ST0 = XR0 + 2*XR_CH
RED0 = ST0 + 16384
K1_LDS = RED0 + 16384

def gen_k1(mimic=0):
    A = Asm()
    A("s_cmp_ge_u32 s2, 256")
    A("s_cbranch_scc1 K1_done")
    A("s_load_dwordx4 s[4:7], s[0:1], 32")
    A("s_load_dwordx2 s[14:15], s[0:1], 88")
    A("s_load_dwordx2 s[8:9], s[0:1], 56")
    A("v_lshrrev_b32 v1, 6, v0")
    A("v_and_b32 v2, 63, v0")
    A("v_readfirstlane_b32 s40, v1")
    A("s_cmp_ge_u32 s2, 224")
    A("s_cbranch_scc1 K1_pack")
    A("s_and_b32 s41, s40, 1")
    A("s_lshr_b32 s42, s40, 1")
    A("s_lshl_b32 s43, s2, 1")
    A("s_add_u32 s44, s43, s41")
    A("s_lshl_b32 s45, s43, 12")
    A("v_lshlrev_b32 v3, 4, v0")
    A("v_lshlrev_b32 v4, 4, v2")
    A("s_waitcnt lgkmcnt(0)")
    A("s_add_u32 s16, s4, s45")
    A("s_addc_u32 s17, s5, 0")
    A("s_mov_b32 s18, 4096")
    A("s_mov_b32 s19, 0x20000")
    A("s_add_u32 s20, s16, 4096")
    A("s_addc_u32 s21, s17, 0")
    A("s_mov_b32 s22, 4096")
    A("s_mov_b32 s23, 0x20000")
    srd(A, 28, 14, WS_SIZE)
    FB = 112
    for ch in range(2):
        b = FB + 12*ch
        sr = 16 + 4*ch
        A(f"buffer_load_dwordx4 v[{b}:{b+3}], v3, s[{sr}:{sr+3}], 0 offen offset:4")
        A(f"buffer_load_dwordx4 v[{b+4}:{b+7}], v3, s[{sr}:{sr+3}], 0 offen offset:8")
        A(f"buffer_load_dword v{b+8}, v3, s[{sr}:{sr+3}], 0 offen")
    A("s_lshl_b32 s46, s41, 12")
    A("s_add_u32 s24, s16, s46")
    A("s_addc_u32 s25, s17, 0")
    A("s_load_dwordx2 s[26:27], s[24:25], 0")
    A("s_lshl_b32 s46, s43, 1")
    A("s_add_u32 s24, s6, s46")
    A("s_addc_u32 s25, s7, 0")
    A("s_load_dword s32, s[24:25], 0")
    A(f"s_mul_i32 s46, s44, {KVS}")
    A("s_lshl_b32 s47, s42, 11")
    A("s_add_u32 s48, s46, s47")
    A(f"s_add_u32 s48, s48, {WS_KVR}")
    A(f"s_mul_i32 s49, s41, {XR_CH}")
    A(f"s_add_u32 s49, s49, {XR0}")
    A("s_add_u32 s50, s49, s47")
    A("s_mov_b32 m0, s50")
    A("s_add_u32 s51, s48, 1024")
    A("buffer_load_dwordx4 v4, s[28:31], s48 offen lds")
    A("s_add_u32 m0, s50, 1024")
    A("s_nop 0")
    A("buffer_load_dwordx4 v4, s[28:31], s51 offen lds")
    A("s_lshl_b32 s47, s40, 12")
    A(f"s_add_u32 s50, s47, {ST0}")
    A(f"s_add_u32 s48, s47, {WS_ST1}")
    for i in range(4):
        A(f"s_add_u32 m0, s50, {1024*i}")
        A(f"s_add_u32 s51, s48, {1024*i}")
        A("buffer_load_dwordx4 v4, s[28:31], s51 offen lds")
    XT = 176
    A("v_and_b32 v5, 15, v2")
    A("v_lshrrev_b32 v6, 4, v2")
    A("v_lshlrev_b32 v7, 5, v5")
    A("v_lshl_add_u32 v7, v6, 3, v7")
    A("s_lshl_b32 s47, s42, 11")
    A("s_add_u32 s48, s46, s47")
    A(f"s_add_u32 s48, s48, {WS_XT}")
    for i in range(4):
        A(f"buffer_load_dwordx2 v[{XT+2*i}:{XT+2*i+1}], v7, s[28:31], s48 offen offset:{512*i}")
    A("v_mov_b32 v16, 0\nv_mov_b32 v17, 0\nv_mov_b32 v18, 0\nv_mov_b32 v19, 0")
    A(f"s_add_u32 s47, s49, 4096")
    A("v_add_u32 v8, s47, v4")
    A("s_mov_b32 exec_hi, 0")
    A("ds_write_b128 v8, v[16:19]")
    A("s_mov_b64 exec, -1")
    A("s_waitcnt lgkmcnt(0)")
    A("s_lshl_b32 s33, s26, 16")
    A("s_lshr_b32 s34, s26, 16")
    A("s_lshl_b32 s35, s27, 16")
    A("s_or_b32 s34, s34, s35")
    A("v_writelane_b32 v18, s33, 2")
    A("v_writelane_b32 v18, s26, 3")
    A("v_writelane_b32 v19, s33, 0")
    A("v_writelane_b32 v19, s26, 1")
    A("v_writelane_b32 v19, s34, 2")
    A("v_writelane_b32 v19, s27, 3")
    A("v_and_b32 v8, 3, v2")
    A(f"v_mul_u32_u24 v8, {HC_R}, v8")
    A("v_bfe_u32 v9, v2, 2, 1")
    A("v_xor_b32 v9, 1, v9")
    A("v_lshl_add_u32 v8, v9, 4, v8")
    A(f"s_mul_i32 s47, s41, {HC_CH}")
    A("v_add_u32 v8, s47, v8")
    A("s_mov_b64 exec, 0xff")
    A("ds_write_b128 v8, v[16:19]")
    A("s_mov_b64 exec, -1")
    A("s_lshl_b32 s33, s32, 16")
    A("s_and_b32 s34, s32, 0xffff0000")
    A("s_cmp_eq_u32 s41, 0")
    A("s_cselect_b32 s32, s33, s34")
    A("v_add_u32 v8, 32, v3")
    for ch in range(2):
        b = FB + 12*ch
        A(f"s_waitcnt vmcnt({13 - 3*ch})")
        w = {0: b+8, 1: b, 2: b+1, 3: b+2, 4: b+3, 5: b+7}
        T0, T2 = 48 + 8*ch, 52 + 8*ch
        for i in range(4):
            A(f"v_alignbit_b32 v{T0+i}, v{w[i+1]}, v{w[i]}, 16")
        for i in range(4):
            A(f"v_alignbit_b32 v{T2+i}, v{w[i+2]}, v{w[i+1]}, 16")
        o = ch*HC_CH
        A(f"ds_write_b128 v8, v[{b}:{b+3}] offset:{o + 1*HC_R}")
        A(f"ds_write_b128 v8, v[{b+4}:{b+7}] offset:{o + 3*HC_R}")
        A(f"ds_write_b128 v8, v[{T0}:{T0+3}] offset:{o + 0*HC_R}")
        A(f"ds_write_b128 v8, v[{T2}:{T2+3}] offset:{o + 2*HC_R}")
    A("v_bfe_u32 v9, v2, 2, 2")
    A(f"v_mul_u32_u24 v10, {HC_R}, v9")
    A("v_and_b32 v9, 3, v2")
    A("v_lshl_add_u32 v10, v9, 3, v10")
    A("v_lshlrev_b32 v9, 4, v6")
    A("v_sub_u32 v10, v10, v9")
    A(f"s_mul_i32 s47, s41, {HC_CH}")
    A("s_lshl_b32 s51, s42, 8")
    A("s_add_u32 s47, s47, s51")
    A("s_add_u32 s47, s47, 48")
    A("v_add_u32 v10, s47, v10")
    A("v_lshlrev_b32 v11, 5, v5")
    A("v_add_u32 v11, v11, v9")
    A("s_add_u32 s47, s49, s51")
    A("s_add_u32 s47, s47, 528")
    A("v_sub_u32 v11, s47, v11")
    A("s_waitcnt vmcnt(4) lgkmcnt(0)")
    A("s_barrier")
    ACC = 16
    SETS = [(48, 80), (112, 144)]
    def reads(setidx, i):
        a_, b_ = SETS[setidx]
        L = [f"ds_read_b128 v[{b_}:{b_+3}], v11 offset:{512*7 + 64*i}"]
        for mu in range(8):
            L.append(f"ds_read_b64_tr_b16 v[{a_+4*mu}:{a_+4*mu+1}], v10 offset:{512*mu + 64*i}")
            L.append(f"ds_read_b64_tr_b16 v[{a_+4*mu+2}:{a_+4*mu+3}], v10 offset:{512*mu + 64*i + 8}")
        for tau in range(1, 8):
            L.append(f"ds_read_b128 v[{b_+4*tau}:{b_+4*tau+3}], v11 offset:{512*(7-tau) + 64*i}")
        return L
    for r_ in reads(0, 0): A(r_)
    for i in range(4):
        a_, b_ = SETS[i & 1]
        nxt = reads((i+1) & 1, i+1) if i < 3 else []
        A("s_waitcnt lgkmcnt(0)")
        k = 0
        for tau in range(8):
            for mu in range(8 - tau):
                t = tau + mu
                c_ = "0" if (i == 0 and tau == 0) else f"v[{ACC+4*t}:{ACC+4*t+3}]"
                A(f"v_mfma_f32_16x16x32_bf16 v[{ACC+4*t}:{ACC+4*t+3}], v[{a_+4*mu}:{a_+4*mu+3}], v[{b_+4*tau}:{b_+4*tau+3}], {c_}")
                if k < len(nxt): A(nxt[k])
                k += 1
    A("v_lshlrev_b32 v12, 5, v5")
    A("v_lshl_add_u32 v12, v6, 3, v12")
    A("s_lshl_b32 s47, s42, 11")
    A("s_sub_u32 s47, s49, s47")
    A(f"s_add_u32 s47, s47, {4088 - 1536}")
    A("v_sub_u32 v12, s47, v12")
    A("v_lshlrev_b32 v13, 6, v5")
    A("v_lshl_add_u32 v13, v6, 4, v13")
    A("s_lshl_b32 s47, s42, 12")
    A(f"s_add_u32 s47, s47, {ST0}")
    A("v_add_u32 v13, s47, v13")
    A("s_lshl_b32 s47, s40, 12")
    A(f"s_add_u32 s47, s47, {RED0}")
    A("v_add_u32 v14, s47, v4")
    A("s_xor_b32 s47, s40, 2")
    A("s_lshl_b32 s47, s47, 12")
    A(f"s_add_u32 s47, s47, {RED0}")
    A("v_add_u32 v15, s47, v4")
    A("s_cmp_eq_u32 s42, 0")
    A("s_cbranch_scc0 K1_h1")
    for i in range(4):
        A(f"ds_write_b128 v14, v[{ACC+16+4*i}:{ACC+16+4*i+3}] offset:{1024*i}")
    A("s_branch K1_hj")
    A("K1_h1:")
    for i in range(4):
        A(f"ds_write_b128 v14, v[{ACC+4*i}:{ACC+4*i+3}] offset:{1024*i}")
    A("s_nop 1")
    for i in range(16):
        A(f"v_mov_b32 v{ACC+i}, v{ACC+16+i}")
    A("K1_hj:")
    KV = 48; SA = 64; SB = 80; PR = 96
    for i in range(4):
        A(f"ds_read_b64 v[{KV+2*i}:{KV+2*i+1}], v12 offset:{1536 - 512*i}")
        A(f"ds_read_b128 v[{SA+4*i}:{SA+4*i+3}], v13 offset:{1024*i}")
        A(f"ds_read_b128 v[{SB+4*i}:{SB+4*i+3}], v13 offset:{1024*i + 8192}")
    A("s_waitcnt lgkmcnt(0)")
    A("s_barrier")
    for i in range(4):
        A(f"ds_read_b128 v[{PR+4*i}:{PR+4*i+3}], v15 offset:{1024*i}")
    A("v_lshrrev_b32 v8, 1, v5")
    A("v_mul_u32_u24 v8, 28672, v8")
    A("v_and_b32 v9, 1, v5")
    A("v_lshl_add_u32 v8, v9, 5, v8")
    A("v_lshl_add_u32 v8, v6, 3, v8")
    A("s_lshl_b32 s47, s44, 6")
    A("v_add_u32 v8, s47, v8")
    A("s_mul_i32 s47, s42, 917504")
    A(f"s_add_u32 s47, s47, {WS_HT}")
    A("s_waitcnt vmcnt(0)")
    T = 112
    for i in range(4):
        A(f"s_waitcnt lgkmcnt({3-i})")
        A(f"v_and_b32 v{T}, 0xffff0000, v{KV+2*i+1}")
        A(f"v_lshlrev_b32 v{T+1}, 16, v{KV+2*i+1}")
        A(f"v_and_b32 v{T+2}, 0xffff0000, v{KV+2*i}")
        A(f"v_lshlrev_b32 v{T+3}, 16, v{KV+2*i}")
        A(f"v_lshlrev_b32 v{T+4}, 16, v{XT+2*i}")
        A(f"v_and_b32 v{T+5}, 0xffff0000, v{XT+2*i}")
        A(f"v_lshlrev_b32 v{T+6}, 16, v{XT+2*i+1}")
        A(f"v_and_b32 v{T+7}, 0xffff0000, v{XT+2*i+1}")
        for r in range(4):
            A(f"v_add_f32 v{T+8+r}, v{ACC+4*i+r}, v{PR+4*i+r}")
        for r in range(4):
            A(f"v_fma_f32 v{T+8+r}, v{T+r}, s32, v{T+8+r}")
        for r in range(4):
            A(f"v_fma_f32 v{T+12+r}, v{T+4+r}, v{SA+4*i+r}, v{SB+4*i+r}")
        for r in range(4):
            A(f"v_fma_f32 v{T+8+r}, v{T+12+r}, v{T+8+r}, v{T+4+r}")
        O = T + 16 + 2*i
        A(f"v_cvt_pk_bf16_f32 v{O}, v{T+8}, v{T+9}")
        A(f"v_cvt_pk_bf16_f32 v{O+1}, v{T+10}, v{T+11}")
        A(f"buffer_store_dwordx2 v[{O}:{O+1}], v8, s[28:31], s47 offen sc0 sc1")
        if i < 3: A("s_add_u32 s47, s47, 229376")
    A("s_endpgm")

    A("K1_pack:")
    A("s_cmp_ge_u32 s2, 252")
    A("s_cbranch_scc1 K1_done")
    A("s_sub_u32 s41, s2, 224")
    A("v_lshrrev_b32 v3, 2, v2")
    A("v_mul_u32_u24 v3, 3584, v3")
    A("v_and_b32 v4, 3, v2")
    A("v_lshl_add_u32 v3, v4, 4, v3")
    A("s_lshl_b32 s42, s41, 7")
    A(f"s_mul_i32 s43, s40, {7*16*3584}")
    A("s_add_u32 s42, s42, s43")
    A("s_mul_i32 s44, s40, 7168")
    A("s_waitcnt lgkmcnt(0)")
    srd(A, 16, 8, D*F*2)
    srd(A, 28, 14, WS_SIZE)
    for sl in range(2):
        for k in range(7):
            A(f"s_add_u32 m0, s44, {sl*28672 + 1024*k}")
            A(f"s_add_u32 s45, s42, {sl*64 + k*16*3584}")
            A("buffer_load_dwordx4 v3, s[16:19], s45 offen lds")
    A("v_lshrrev_b32 v5, 5, v2")
    A("v_bfe_u32 v6, v2, 2, 2")
    A("v_lshl_add_u32 v6, v5, 3, v6")
    A("v_lshlrev_b32 v6, 6, v6")
    A("v_bfe_u32 v7, v2, 4, 1")
    A("v_lshl_add_u32 v6, v7, 5, v6")
    A("v_and_b32 v7, 3, v2")
    A("v_lshl_add_u32 v6, v7, 3, v6")
    A("v_add_u32 v6, s44, v6")
    A("v_lshlrev_b32 v8, 4, v2")
    A("v_lshlrev_b32 v9, 2, v2")
    A("s_lshl_b32 s45, s40, 8")
    A("v_add_u32 v10, s45, v9")
    A("v_and_b32 v11, 31, v2")
    A("v_lshlrev_b32 v11, 2, v11")
    A("s_mov_b32 s50, 0x3f803f80")
    FR = 16
    for sl in range(2):
        A(f"s_waitcnt vmcnt({7*(1-sl)})")
        for k in range(7):
            r = FR + 28*sl + 4*k
            A(f"ds_read_b64_tr_b16 v[{r}:{r+1}], v6 offset:{sl*28672 + 1024*k}")
            A(f"ds_read_b64_tr_b16 v[{r+2}:{r+3}], v6 offset:{sl*28672 + 1024*k + 256}")
    A("v_mov_b32 v12, 0\nv_mov_b32 v13, 0")
    A("s_waitcnt lgkmcnt(0)")
    for sl in range(2):
        for k in range(28):
            A(f"v_dot2_f32_bf16 v{12+sl}, v{FR+28*sl+k}, s50, v{12+sl}")
    A("s_nop 2")
    SUM0 = 57344
    A(f"ds_write_b32 v10, v12 offset:{SUM0}")
    A(f"ds_write_b32 v10, v13 offset:{SUM0+1024}")
    A("s_waitcnt lgkmcnt(0)")
    A("s_barrier")
    for sl in range(2):
        for j in range(8):
            A(f"ds_read_b32 v{72+8*sl+j}, v11 offset:{SUM0 + 1024*sl + 128*j}")
    A("s_waitcnt lgkmcnt(0)")
    for sl in range(2):
        b = 72 + 8*sl
        for j in range(1, 8):
            A(f"v_add_f32 v{b}, v{b}, v{b+j}")
        A(f"v_mul_f32 v{b}, 0x{f32bits(1.0/448):08x}, v{b}")
    A(f"s_mul_i32 s46, s41, {2*28672}")
    A("s_add_u32 s46, s46, s44")
    A(f"s_add_u32 s46, s46, {WS_W1P}")
    for sl in range(2):
        m = 72 + 8*sl
        for k in range(7):
            r = FR + 28*sl + 4*k
            for j in range(4):
                A(f"v_lshlrev_b32 v90, 16, v{r+j}")
                A(f"v_and_b32 v91, 0xffff0000, v{r+j}")
                A(f"v_sub_f32 v90, v90, v{m}")
                A(f"v_sub_f32 v91, v91, v{m}")
                A(f"v_cvt_pk_bf16_f32 v{r+j}, v90, v91")
            A(f"s_add_u32 s47, s46, {sl*28672 + 1024*k}")
            A(f"buffer_store_dwordx4 v[{r}:{r+3}], v8, s[28:31], s47 offen sc0 sc1")
    A("K1_done:")
    A("s_endpgm")
    return A.text()
```

```python
from common import *

K2_LDS = 4*28672

def gen_k2():
    A = Asm()
    A("s_cmp_ge_u32 s2, 256")
    A("s_cbranch_scc1 K2_done")
    A("s_load_dwordx2 s[14:15], s[0:1], 88")
    A("s_load_dwordx2 s[8:9], s[0:1], 64")
    A("v_lshrrev_b32 v1, 6, v0")
    A("v_and_b32 v2, 63, v0")
    A("v_readfirstlane_b32 s40, v1")
    A("s_cmp_ge_u32 s2, 224")
    A("s_cbranch_scc1 K2_pack")
    A("s_and_b32 s41, s2, 7")
    A("s_lshr_b32 s42, s2, 3")
    A("s_mul_i32 s43, s42, 37")
    A("s_lshr_b32 s43, s43, 8")
    A("s_mul_i32 s44, s43, 7")
    A("s_sub_u32 s44, s42, s44")
    A("s_lshr_b32 s45, s41, 1")
    A("s_lshl_b32 s45, s45, 2")
    A("s_add_u32 s45, s45, s43")
    A("s_and_b32 s46, s41, 1")
    A("s_mul_i32 s46, s46, 7")
    A("s_add_u32 s46, s46, s44")
    A("v_lshlrev_b32 v3, 4, v2")
    A(f"s_mul_i32 s47, s45, {4*28672}")
    A("s_mul_i32 s48, s40, 7168")
    A("s_add_u32 s47, s47, s48")
    A(f"s_add_u32 s47, s47, {WS_HT}")
    A("s_lshl_b32 s49, s46, 2")
    A("s_add_u32 s49, s49, s40")
    A("s_mul_i32 s50, s49, 28672")
    A(f"s_add_u32 s50, s50, {WS_W1P}")
    A("s_waitcnt lgkmcnt(0)")
    srd(A, 28, 14, WS_SIZE)
    AF = 16
    def dma_tile(j):
        for k in range(7):
            A(f"s_add_u32 m0, s48, {j*28672 + 1024*k}")
            A(f"s_add_u32 s51, s47, {j*28672 + 1024*k}")
            A("buffer_load_dwordx4 v3, s[28:31], s51 offen lds")
    dma_tile(0)
    for k in range(28):
        if k % 4 == 0:
            A(f"s_add_u32 s52, s50, {1024*k}")
        A(f"buffer_load_dwordx4 v[{AF+4*k}:{AF+4*k+3}], v3, s[28:31], s52 offen offset:{1024*(k%4)}")
    for j in range(1, 4): dma_tile(j)
    A("v_lshrrev_b32 v5, 5, v2")
    A("v_bfe_u32 v6, v2, 2, 2")
    A("v_lshl_add_u32 v6, v5, 3, v6")
    A("v_lshlrev_b32 v6, 6, v6")
    A("v_bfe_u32 v7, v2, 4, 1")
    A("v_lshl_add_u32 v6, v7, 5, v6")
    A("v_and_b32 v7, 3, v2")
    A("v_lshl_add_u32 v6, v7, 3, v6")
    A(f"s_mul_i32 s53, s45, {4*114688}")
    A("s_lshl_b32 s54, s46, 13")
    A("s_add_u32 s53, s53, s54")
    A("s_lshl_b32 s54, s40, 11")
    A("s_add_u32 s53, s53, s54")
    A(f"s_add_u32 s53, s53, {WS_HP}")
    A("s_lshl_b32 s55, s46, 11")
    A("s_mul_i32 s56, s40, 28672")
    A("s_add_u32 s55, s55, s56")
    A("v_add_u32 v8, s55, v6")
    A("v_and_b32 v9, 31, v2")
    A("v_lshlrev_b32 v9, 3, v9")
    A("s_lshl_b32 s55, s46, 14")
    A("s_lshl_b32 s56, s45, 10")
    A("s_add_u32 s55, s55, s56")
    A("s_lshl_b32 s56, s40, 8")
    A("s_add_u32 s55, s55, s56")
    A(f"s_add_u32 s55, s55, {WS_ST2}")
    A("s_mov_b32 s57, 0x3f803f80")
    ACC = [128, 144]
    BF = 160
    NB = 4
    OUT = 176
    def bread(j, k):
        r = BF + 4*(k % NB)
        return [f"ds_read_b64_tr_b16 v[{r}:{r+1}], v6 offset:{1024*k}",
                f"ds_read_b64_tr_b16 v[{r+2}:{r+3}], v6 offset:{1024*k + 256}"]
    def epilogue_ops(j):
        acc = ACC[j & 1]; o = OUT + 8*(j & 1)
        L = []
        for i in range(8):
            L.append(f"v_cvt_pk_bf16_f32 v{o+i}, v{acc+2*i}, v{acc+2*i+1}")
        for i in range(8):
            L.append(f"v_pk_max_i16 v{o+i}, v{o+i}, 0")
        return L
    def stores(j):
        o = OUT + 8*(j & 1)
        return [f"s_add_u32 s58, s53, {j*114688}",
                f"buffer_store_dwordx4 v[{o}:{o+3}], v3, s[28:31], s58 offen sc0 sc1",
                f"buffer_store_dwordx4 v[{o+4}:{o+7}], v3, s[28:31], s58 offen offset:1024 sc0 sc1"]
    nstores_before = 0
    for j in range(4):
        if j == 0:
            A(f"s_waitcnt vmcnt({28+21})")
        else:
            remaining = 7*(3-j)
            A(f"s_waitcnt vmcnt({min(63, remaining)})")
        A("s_barrier")
        if j > 0: A("v_add_u32 v6, 28672, v6")
        A(f"s_cmp_lg_u32 s40, {j}")
        A(f"s_cbranch_scc1 K2_nostat{j}")
        A("ds_read_b64_tr_b16 v[192:193], v8 offset:0")
        A("ds_read_b64_tr_b16 v[194:195], v8 offset:256")
        A("ds_read_b64_tr_b16 v[196:197], v8 offset:1024")
        A("ds_read_b64_tr_b16 v[198:199], v8 offset:1280")
        A("v_mov_b32 v200, 0\nv_mov_b32 v201, 0")
        A("s_waitcnt lgkmcnt(0)")
        for i in range(8):
            A(f"v_dot2_f32_bf16 v200, v{192+i}, s57, v200")
            A(f"v_dot2_f32_bf16 v201, v{192+i}, v{192+i}, v201")
        A("s_nop 2")
        A("v_mov_b32 v202, v200\nv_mov_b32 v203, v201")
        A("s_nop 1")
        A("v_permlane32_swap_b32 v200, v202")
        A("v_permlane32_swap_b32 v201, v203")
        A("s_nop 1")
        A("v_add_f32 v200, v200, v202")
        A("v_add_f32 v201, v201, v203")
        A("s_mov_b32 exec_hi, 0")
        A("buffer_store_dwordx2 v[200:201], v9, s[28:31], s55 offen sc0 sc1")
        A("s_mov_b64 exec, -1")
        A(f"K2_nostat{j}:")
        pre = []
        for k in range(NB-1):
            for x in bread(j, k): A(x)
        fill = []
        if j > 0:
            fill = epilogue_ops(j-1) + stores(j-1)
        acc = ACC[j & 1]
        fi = 0
        for k in range(28):
            rd = bread(j, k+NB-1) if k+NB-1 < 28 else []
            for x in rd: A(x)
            later = min(27-k, NB-1)
            if j == 0:
                A(f"s_waitcnt vmcnt({27-k+21}) lgkmcnt({2*later})")
            else:
                A(f"s_waitcnt lgkmcnt({2*later})")
            c_ = "0" if k == 0 else f"v[{acc}:{acc+15}]"
            r = BF + 4*(k % NB)
            A(f"v_mfma_f32_32x32x16_bf16 v[{acc}:{acc+15}], v[{AF+4*k}:{AF+4*k+3}], v[{r}:{r+3}], {c_}")
            if k >= 2:
                for _ in range(2):
                    if fi < len(fill):
                        A(fill[fi]); fi += 1
        while fi < len(fill):
            A(fill[fi]); fi += 1
        if j > 0: nstores_before += 2
    A.nop(12)
    for x in epilogue_ops(3): A(x)
    for x in stores(3): A(x)
    A("s_endpgm")

    A("K2_pack:")
    A("s_cmp_ge_u32 s2, 252")
    A("s_cbranch_scc1 K2_done")
    A("s_sub_u32 s41, s2, 224")
    A("v_lshlrev_b32 v3, 4, v2")
    A("s_mul_i32 s42, s41, 57344")
    A("s_mul_i32 s43, s40, 14336")
    A("s_add_u32 s42, s42, s43")
    A("s_waitcnt lgkmcnt(0)")
    srd(A, 16, 8, D*F*2)
    srd(A, 28, 14, WS_SIZE)
    for k in range(14):
        A(f"s_add_u32 m0, s43, {1024*k}")
        A(f"s_add_u32 s45, s42, {1024*k}")
        A("buffer_load_dwordx4 v3, s[16:19], s45 offen lds")
    A("v_lshrrev_b32 v5, 5, v2")
    A("v_bfe_u32 v6, v2, 2, 2")
    A("v_lshl_add_u32 v6, v5, 2, v6")
    A("v_mul_u32_u24 v6, 896, v6")
    A("v_bfe_u32 v7, v2, 4, 1")
    A("v_lshl_add_u32 v6, v7, 5, v6")
    A("v_and_b32 v7, 3, v2")
    A("v_lshl_add_u32 v6, v7, 3, v6")
    A("v_add_u32 v6, s43, v6")
    A("s_lshl_b32 s46, s41, 2")
    A("s_add_u32 s46, s46, s40")
    A("s_lshl_b32 s46, s46, 10")
    A(f"s_add_u32 s46, s46, {WS_W2P}")
    A("s_waitcnt vmcnt(0)")
    for dt in range(14):
        r = 16 + 4*dt
        A(f"ds_read_b64_tr_b16 v[{r}:{r+1}], v6 offset:{64*dt}")
        A(f"ds_read_b64_tr_b16 v[{r+2}:{r+3}], v6 offset:{64*dt + 8*896}")
    for dt in range(14):
        r = 16 + 4*dt
        A(f"s_waitcnt lgkmcnt({min(15, 2*(13-dt))})")
        A(f"s_add_u32 s47, s46, {dt*114688}")
        A(f"buffer_store_dwordx4 v[{r}:{r+3}], v3, s[28:31], s47 offen sc0 sc1")
    A("K2_done:")
    A("s_endpgm")
    return A.text()
```

```python
from common import *
from k0 import f32bits, bf16_round

K3_HT = 0
K3_RED = 8192
K3_LDS = K3_RED + 4*3*4096

def gen_k3():
    A = Asm()
    A("s_cmp_ge_u32 s2, 224")
    A("s_cbranch_scc1 K3_done")
    A("s_load_dwordx2 s[14:15], s[0:1], 88")
    A("s_load_dwordx2 s[8:9], s[0:1], 72")
    A("v_lshrrev_b32 v1, 6, v0")
    A("v_and_b32 v2, 63, v0")
    A("v_readfirstlane_b32 s40, v1")
    A("s_and_b32 s41, s2, 7")
    A("s_lshr_b32 s42, s2, 3")
    A("s_mul_i32 s43, s42, 37")
    A("s_lshr_b32 s43, s43, 8")
    A("s_mul_i32 s44, s43, 7")
    A("s_sub_u32 s44, s42, s44")
    A("s_lshl_b32 s45, s41, 2")
    A("s_add_u32 s45, s45, s43")
    A("v_lshlrev_b32 v3, 4, v2")
    A("s_mul_i32 s46, s40, 28672")
    A(f"s_mul_i32 s47, s45, {2*114688}")
    A("s_add_u32 s47, s47, s46")
    A(f"s_add_u32 s47, s47, {WS_HP}")
    A("s_add_u32 s48, s47, 114688")
    A(f"s_mul_i32 s49, s44, {2*114688}")
    A("s_add_u32 s49, s49, s46")
    A(f"s_add_u32 s49, s49, {WS_W2P}")
    A("s_add_u32 s50, s49, 114688")
    A("s_waitcnt lgkmcnt(0)")
    srd(A, 28, 14, WS_SIZE)
    srd(A, 16, 8, S*896)
    NG = 7
    RING = 16
    ACC = RING + 16*NG
    def loads(slot):
        r = RING + 16*slot
        return [f"buffer_load_dwordx4 v[{r}:{r+3}], v3, s[28:31], s49 offen",
                f"buffer_load_dwordx4 v[{r+8}:{r+11}], v3, s[28:31], s47 offen",
                f"buffer_load_dwordx4 v[{r+4}:{r+7}], v3, s[28:31], s50 offen",
                f"buffer_load_dwordx4 v[{r+12}:{r+15}], v3, s[28:31], s48 offen",
                "s_add_u32 s47, s47, 1024\ns_add_u32 s48, s48, 1024\ns_add_u32 s49, s49, 1024\ns_add_u32 s50, s50, 1024"]
    A(f"s_mul_i32 s51, s45, {2*28672}")
    A("s_lshl_b32 s52, s44, 12")
    A("s_add_u32 s51, s51, s52")
    A(f"s_add_u32 s51, s51, {WS_HT}")
    A("s_lshr_b32 s52, s40, 1")
    A("s_mul_i32 s53, s52, 28672")
    A("s_add_u32 s51, s51, s53")
    A("s_and_b32 s54, s40, 1")
    A("s_lshl_b32 s55, s54, 11")
    A("s_add_u32 s51, s51, s55")
    A("s_lshl_b32 s55, s40, 11")
    A("s_mov_b32 m0, s55")
    A("s_add_u32 s56, s51, 1024")
    A("buffer_load_dwordx4 v3, s[28:31], s51 offen lds")
    A("s_add_u32 m0, s55, 1024")
    A("s_nop 0")
    A("buffer_load_dwordx4 v3, s[28:31], s56 offen lds")
    A("v_and_b32 v4, 31, v2")
    A("v_lshrrev_b32 v5, 5, v2")
    A("v_lshlrev_b32 v6, 3, v4")
    A(f"v_mul_u32_u24 v7, {7*16384}, v5")
    A("v_add_u32 v6, v6, v7")
    A("s_lshl_b32 s56, s45, 9")
    A("s_lshl_b32 s57, s52, 8")
    A("s_add_u32 s56, s56, s57")
    A(f"s_add_u32 s56, s56, {WS_ST2}")
    STP = 192
    for i in range(7):
        A(f"buffer_load_dwordx2 v[{STP+2*i}:{STP+2*i+1}], v6, s[28:31], s56 offen")
        if i < 6: A("s_add_u32 s56, s56, 16384")
    NSIDE = 9
    for sl in range(NG):
        for x in loads(sl): A(x)
    def mfmas(slot, first):
        r = RING + 16*slot
        L = []
        for is_ in range(2):
            for id_ in range(2):
                t = ACC + 16*(2*is_ + id_)
                c_ = "0" if first else f"v[{t}:{t+15}]"
                L.append(f"v_mfma_f32_32x32x16_bf16 v[{t}:{t+15}], v[{r+4*id_}:{r+4*id_+3}], v[{r+8+4*is_}:{r+8+4*is_+3}], {c_}")
        return L
    def round_(first, with_loads, label=None):
        for sl in range(NG):
            if with_loads:
                A(f"s_waitcnt vmcnt({4*(NG-1)})")
            else:
                A(f"s_waitcnt vmcnt({4*(NG-1-sl)})")
            for x in mfmas(sl, first and sl == 0): A(x)
            if with_loads:
                for x in loads(sl): A(x)
    round_(True, True)
    A("s_mov_b32 s60, 2")
    A("K3_loop:")
    round_(False, True)
    A("s_sub_u32 s60, s60, 1")
    A("s_cmp_lg_u32 s60, 0")
    A("s_cbranch_scc1 K3_loop")
    round_(False, False)
    A("v_mov_b32 v8, 0\nv_mov_b32 v9, 0")
    for i in range(7):
        A(f"v_add_f32 v8, v8, v{STP+2*i}")
        A(f"v_add_f32 v9, v9, v{STP+2*i+1}")
    A("v_mov_b32 v10, v8\nv_mov_b32 v11, v9")
    A("s_nop 1")
    A("v_permlane32_swap_b32 v8, v10")
    A("v_permlane32_swap_b32 v9, v11")
    A("s_nop 1")
    A("v_add_f32 v8, v8, v10")
    A("v_add_f32 v9, v9, v11")
    from k0 import emit_ln_scalars
    emit_ln_scalars(A, 8, 9, 12, 13, 10)
    A("s_nop 4")
    for w in range(4):
        A(f"s_cmp_lg_u32 s40, {w}")
        A(f"s_cbranch_scc1 K3_snd{w}")
        for t in range(4):
            if t == w: continue
            idx = w if w < t else w - 1
            for g in range(4):
                r = ACC + 16*t + 4*g
                A(f"ds_write_b128 v3, v[{r}:{r+3}] offset:{K3_RED + (t*3+idx)*4096 + 1024*g}")
        if w != 0:
            A("s_nop 1")
            for i in range(16):
                A(f"v_mov_b32 v{ACC+i}, v{ACC+16*w+i}")
        A(f"K3_snd{w}:")
    A("v_bfe_u32 v6, v2, 2, 2")
    A("v_lshl_add_u32 v6, v5, 2, v6")
    A("v_lshlrev_b32 v6, 6, v6")
    A("v_bfe_u32 v7, v2, 4, 1")
    A("v_lshl_add_u32 v6, v7, 5, v6")
    A("v_and_b32 v7, 3, v2")
    A("v_lshl_add_u32 v6, v7, 3, v6")
    A("v_add_u32 v6, s55, v6")
    HR = 16
    for g in range(4):
        A(f"ds_read_b64_tr_b16 v[{HR+2*g}:{HR+2*g+1}], v6 offset:{512*g}")
    A("s_mul_i32 s57, s40, 12288")
    A("v_add_u32 v7, s57, v3")
    A("s_waitcnt lgkmcnt(0)")
    A("s_barrier")
    PR = 32
    for j in range(3):
        for g in range(4):
            A(f"ds_read_b128 v[{PR+16*j+4*g}:{PR+16*j+4*g+3}], v7 offset:{K3_RED + 4096*j + 1024*g}")
    A("v_mul_u32_u24 v14, 896, v4")
    A("v_lshl_add_u32 v14, v5, 4, v14")
    A("s_mul_i32 s56, s45, 57344")
    A("s_mul_i32 s57, s52, 28672")
    A("s_add_u32 s56, s56, s57")
    A("s_lshl_b32 s57, s44, 7")
    A("s_add_u32 s56, s56, s57")
    A("s_lshl_b32 s57, s54, 6")
    A("s_add_u32 s56, s56, s57")
    for j in range(3):
        A(f"s_waitcnt lgkmcnt({4*(2-j)})")
        for i in range(16):
            A(f"v_add_f32 v{ACC+i}, v{ACC+i}, v{PR+16*j+i}")
    T = 96
    for g in range(4):
        A(f"v_lshlrev_b32 v{T}, 16, v{HR+2*g}")
        A(f"v_and_b32 v{T+1}, 0xffff0000, v{HR+2*g}")
        A(f"v_lshlrev_b32 v{T+2}, 16, v{HR+2*g+1}")
        A(f"v_and_b32 v{T+3}, 0xffff0000, v{HR+2*g+1}")
        for r in range(4):
            A(f"v_fma_f32 v{T+r}, v{ACC+4*g+r}, v12, v{T+r}")
        A(f"v_cvt_pk_bf16_f32 v{T+8+2*g}, v{T}, v{T+1}")
        A(f"v_cvt_pk_bf16_f32 v{T+8+2*g+1}, v{T+2}, v{T+3}")
    O = T + 8
    A("s_nop 1")
    for m in range(2):
        A(f"v_permlane32_swap_b32 v{O+4*m}, v{O+4*m+2}")
        A(f"v_permlane32_swap_b32 v{O+4*m+1}, v{O+4*m+3}")
    for m in range(2):
        A(f"buffer_store_dwordx4 v[{O+4*m}:{O+4*m+3}], v14, s[16:19], s56 offen offset:{32*m}")
    A("K3_done:")
    A("s_endpgm")
    return A.text()
```

```python
import sys
from common import *
import k0, k1, k2, k3
def empty(name):
    return f"s_endpgm\n"
def build(order, extra_defs=()):
    defs = {"prep_kernel": (k0.gen_k0(), 256, 256, 25600, dict(vgpr=104)),
          "conv_kernel": (k1.gen_k1(), 256, 256, k1.K1_LDS, dict(vgpr=192)),
          "up_kernel": (k2.gen_k2(), 256, 256, k2.K2_LDS, dict(vgpr=208)),
          "down_kernel": (k3.gen_k3(), 224, 256, k3.K3_LDS, dict(vgpr=208)),
          "empty_kernel": ("s_endpgm\n", 256, 256, 0, dict(vgpr=8))}
    s = HEADER
    for name in order:
        body, grid, block, lds, kw = defs[name]
        s += f"; @launch kernel={name} grid=({grid},1,1) block=({block},1,1) lds={lds}\n"
    s += '.amdgcn_target "amdgcn-amd-amdhsa--gfx950"\n'
    seen = set()
    for name in order:
        if name in seen: continue
        seen.add(name)
        body, grid, block, lds, kw = defs[name]
        s += kernel_text(name, body, **kw)
    return s
if __name__ == "__main__":
    P, C, U, Dn, E = "prep_kernel", "conv_kernel", "up_kernel", "down_kernel", "empty_kernel"
    vs = {"v_base": [P,C,U,Dn], "v_e_end": [P,C,U,Dn,E], "v_e_front": [E,P,C,U,Dn], "v_pp": [P,P,C,U,Dn], "v_cc": [P,C,C,U,Dn], "v_dd": [P,C,U,Dn,Dn]}
    for k, o in vs.items():
        open(f"exp/{k}.s", "w").write(build(o))
```
